```python
import torch

def _softmax(x, axis=-1):
    return torch.softmax(x, dim=axis)
def _gelu(x):
    return torch.nn.functional.gelu(x, approximate="tanh")
def _silu(x):
    return torch.nn.functional.silu(x)
def _sigmoid(x):
    return torch.sigmoid(x)
def _layernorm(x, axis=-1, eps=1e-5):
    m = x.mean(dim=axis, keepdim=True)
    v = x.var(dim=axis, keepdim=True, unbiased=False)
    return (x - m) / torch.sqrt(v + eps)
def _scatter_add(tgt, idx, src, axis=0):
    return tgt.clone().index_add_(axis, idx, src)
def _segment_sum(src, seg, n):
    out = torch.zeros((n,) + src.shape[1:], dtype=src.dtype)
    return out.index_add_(0, seg, src)
def _pad(x, pw):
    flat = tuple(v for pair in reversed(pw) for v in pair)
    return torch.nn.functional.pad(x, flat)

kernel_name = 'standalone__gqa_softmax__near_ridge'

def setup_inputs():

    _w = (lambda a: (lambda t: t.to(torch.bfloat16) if t.is_floating_point() else t)(torch.as_tensor(a)))
    B, Hq, Hkv, Sq, Sk, D = 16, 32, 4, 384, 384, 128
    return {
        "q": _w((lambda *s: torch.randn(*s, dtype=torch.bfloat16) * 0.8)(B, Hq, Sq, D)),
        "k": _w((lambda *s: torch.randn(*s, dtype=torch.bfloat16) * 0.8)(B, Hkv, Sk, D)),
        "v": _w((lambda *s: torch.randn(*s, dtype=torch.bfloat16) * 0.05)(B, Hkv, Sk, D)),
    }

def reference(q, k, v):
    B, Hq, Sq, D = q.shape
    Hkv = k.shape[1]
    rep = Hq // Hkv
    k = (lambda x, n, axis: torch.repeat_interleave(x, n, dim=axis))(k, rep, axis=1)
    v = (lambda x, n, axis: torch.repeat_interleave(x, n, dim=axis))(v, rep, axis=1)
    scale = D ** -0.5
    scores = torch.einsum("bhqd,bhkd->bhqk", q, k) * scale
    p = _softmax(scores, axis=-1)
    return torch.einsum("bhqk,bhkd->bhqd", p, v)
```

```python
import re

class Ins:
    __slots__ = ("text", "kind", "rd", "wr", "srcc", "tag")
    def __init__(self, text, kind, rd=(), wr=(), srcc=(), tag=None):
        self.text = text; self.kind = kind
        self.rd = frozenset(rd); self.wr = frozenset(wr); self.srcc = frozenset(srcc); self.tag = tag

def vr(a, n=1):
    return list(range(a, a + n))
def vs(a, n):
    return f"v[{a}:{a+n-1}]" if n > 1 else f"v{a}"

class Hz:
    def __init__(self):
        self.pos = 0
        self.mw = {}; self.vw = {}; self.tw = {}; self.mc = {}; self.sr = {}
    def need(self, i):
        req = 0
        def nd(d, r, n):
            nonlocal req
            if r in d:
                dist = self.pos - d[r] - 1
                if dist < n: req = max(req, n - dist)
        if i.kind == "mfma":
            for r in i.rd:
                nd(self.vw, r, 2); nd(self.mw, r, 12)
            for r in i.srcc: nd(self.vw, r, 2)
        elif i.kind in ("valu", "trans", "perm"):
            for r in i.rd:
                nd(self.mw, r, 12)
                if i.kind != "trans": nd(self.tw, r, 1)
                if i.kind == "perm": nd(self.vw, r, 2)
            for r in i.wr:
                nd(self.mw, r, 12); nd(self.mc, r, 7); nd(self.sr, r, 2)
        elif i.kind in ("ds", "vmem", "store"):
            for r in i.rd: nd(self.mw, r, 12)
            for r in i.wr: nd(self.mw, r, 12)
        return req
    def update(self, i):
        if i.kind == "mfma":
            for r in i.wr: self.mw[r] = self.pos
            for r in i.srcc: self.mc[r] = self.pos
        elif i.kind in ("valu", "trans", "perm"):
            for r in i.wr:
                self.vw[r] = self.pos; self.mw.pop(r, None)
                if i.kind == "trans": self.tw[r] = self.pos
                else: self.tw.pop(r, None)
        elif i.kind == "store":
            for r in i.rd: self.sr[r] = self.pos
        self.pos += (i.tag if i.kind == "nop" else 1)

class Stream:
    def __init__(self):
        self.ins = []
        self.vm = []
        self.lg = []
        self.auto = True; self.autonops = 0; self.hz = Hz()
    def add(self, i):
        if self.auto and i.kind != "label":
            n = self.hz.need(i)
            if n > 0:
                self.autonops += 1
                nop = Ins(f"s_nop {n-1}", "nop", tag=n)
                self.ins.append(nop); self.hz.update(nop)
            self.hz.update(i)
        self.ins.append(i)
        return i
    def raw(self, text, kind="salu", rd=(), wr=()):
        return self.add(Ins(text, kind, rd, wr))
    def salu(self, text):
        return self.add(Ins(text, "salu"))
    def nop(self, n):
        while n > 0:
            k = min(n, 16)
            self.add(Ins(f"s_nop {k-1}", "nop", tag=k))
            n -= k
    def valu(self, text, rd, wr, trans=False, perm=False):
        return self.add(Ins(text, "trans" if trans else ("perm" if perm else "valu"), rd, wr))
    def mfma(self, d, a, b, c):
        ctext = vs(c, 16) if c is not None else "0"
        return self.add(Ins(f"v_mfma_f32_32x32x16_bf16 {vs(d,16)}, {vs(a,4)}, {vs(b,4)}, {ctext}", "mfma",
                            rd=vr(a,4)+vr(b,4), wr=vr(d,16), srcc=(vr(c,16) if c is not None else ())))
    def ds(self, text, rd, wr, tag):
        self.lg.append(tag)
        return self.add(Ins(text, "ds", rd, wr, tag=tag))
    def vmem(self, text, rd, wr, tag, store=False):
        self.vm.append(tag)
        return self.add(Ins(text, "store" if store else "vmem", rd, wr, tag=tag))
    def wait_lg(self, tag):
        idx = max((i for i, t in enumerate(self.lg) if t == tag), default=None)
        if idx is None:
            return
        n = len(self.lg) - 1 - idx
        assert n <= 15, f"lgkmcnt overflow {n}"
        self.lg = self.lg[idx+1:]
        self.add(Ins(f"s_waitcnt lgkmcnt({n})", "wait"))
    def wait_vm(self, tag):
        idx = max((i for i, t in enumerate(self.vm) if t == tag), default=None)
        if idx is None:
            return
        n = len(self.vm) - 1 - idx
        assert n <= 63
        self.vm = self.vm[idx+1:]
        self.add(Ins(f"s_waitcnt vmcnt({n})", "wait"))
    def wait_all(self):
        self.vm = []; self.lg = []
        self.add(Ins("s_waitcnt vmcnt(0) lgkmcnt(0)", "wait"))
    def label(self, name):
        self.add(Ins(f"{name}:", "label"))
    def text(self):
        out = []
        for i in self.ins:
            if i.kind == "label":
                out.append(i.text)
            else:
                out.append("    " + i.text)
        return "\n".join(out) + "\n"

def check_hazards(ins, name=""):
    pos = 0
    last_mfma_w = {}
    last_valu_w = {}
    last_trans_w = {}
    last_mfma_c = {}
    last_store_rd = {}
    errs = []
    for k, i in enumerate(ins):
        if i.kind == "label":
            continue
        def need(d, r, n, what):
            if r in d:
                dist = pos - d[r] - 1
                if dist < n:
                    errs.append(f"{name} #{k} '{i.text}': {what} v{r} dist {dist} < {n}")
        if i.kind == "mfma":
            for r in i.rd:
                need(last_valu_w, r, 2, "valu->mfma AB")
                need(last_mfma_w, r, 12, "mfma->mfma AB")
            for r in i.srcc:
                need(last_valu_w, r, 2, "valu->mfma C")
        elif i.kind in ("valu", "trans", "perm"):
            for r in i.rd:
                need(last_mfma_w, r, 12, "mfma->valu rd")
                if i.kind != "trans":
                    need(last_trans_w, r, 1, "trans->valu")
                if i.kind == "perm":
                    need(last_valu_w, r, 2, "valu->perm")
            for r in i.wr:
                need(last_mfma_w, r, 12, "mfma->valu wr")
                need(last_mfma_c, r, 7, "mfmaC->valu wr WAR")
                need(last_store_rd, r, 2, "store data WAR")
        elif i.kind in ("ds", "vmem", "store"):
            for r in i.rd:
                need(last_mfma_w, r, 12, "mfma->mem rd")
            for r in i.wr:
                need(last_mfma_w, r, 12, "mfma->load wr")
        if i.kind == "mfma":
            for r in i.wr: last_mfma_w[r] = pos
            for r in i.srcc: last_mfma_c[r] = pos
        elif i.kind in ("valu", "trans", "perm"):
            for r in i.wr:
                last_valu_w[r] = pos
                last_mfma_w.pop(r, None)
                if i.kind == "trans": last_trans_w[r] = pos
                else: last_trans_w.pop(r, None)
        elif i.kind == "store":
            for r in i.rd: last_store_rd[r] = pos
        pos += (i.tag if i.kind == "nop" else 1)
    return errs
```

```python
import sys, struct, math
from asmlib import *

def f2u(x): return struct.unpack("<I", struct.pack("<f", x))[0]

PF = 5
THR = 16384.0
CSC = math.log2(math.e) / math.sqrt(128.0)
C_LIT = f"0x{f2u(CSC):08x}"
NC_LIT = f"0x{f2u(-CSC):08x}"
THR_LIT = f"0x{f2u(THR):08x}"

O = 0
S = [64, 96]
Q = [128, 160]
F = 192
NF = 8
KA = 224
VA = 232
VQO = 236; VK = 237; VV = 238; VT = 239
NM = [240, 241]
L = 242; INV = 243
TS = [244, 245, 246, 247]
T0 = 248; T1 = 249; T2 = 250; T3 = 251
SF = [248, 252]

K_BYTES = 16 * 4 * 384 * 128 * 2
Q_BYTES = 16 * 32 * 384 * 128 * 2
VBASE = 98304

s = Stream()
slow = []

def prologue():
    s.salu("s_cmp_ge_u32 s2, 256")
    s.salu("s_cbranch_scc1 L_end")
    s.salu("s_load_dwordx4 s[4:7], s[0:1], 0")
    s.salu("s_load_dwordx4 s[8:11], s[0:1], 16")
    LN = T0; W = T1; A = T2; B = T3
    s.valu(f"v_and_b32 v{LN}, 63, v0", [0], [LN])
    s.valu(f"v_lshrrev_b32 v{W}, 6, v0", [0], [W])
    s.nop(1)
    s.raw(f"v_readfirstlane_b32 s28, v{W}", "valu", [W], [])
    s.salu("s_and_b32 s30, s2, 7")
    s.salu("s_lshr_b32 s31, s2, 3")
    s.salu("s_lshr_b32 s32, s31, 2")
    s.salu("s_lshl_b32 s30, s30, 3")
    s.salu("s_add_u32 s30, s30, s32")
    s.salu("s_and_b32 s31, s31, 3")
    s.salu("s_mul_i32 s29, s30, 98304")
    s.salu("s_mul_i32 s33, s30, 786432")
    s.salu("s_mul_i32 s34, s31, 196608")
    s.salu("s_add_u32 s33, s33, s34")
    s.salu("s_lshl_b32 s34, s28, 13")
    s.salu("s_add_u32 s33, s33, s34")
    s.salu("s_add_u32 s34, s33, 65536")
    s.salu("s_add_u32 s35, s33, 131072")
    s.salu("s_lshl_b32 s36, s28, 10")
    s.salu("s_add_u32 s37, s29, s36")
    s.valu(f"v_and_b32 v{A}, 31, v{LN}", [LN], [A])
    s.valu(f"v_lshrrev_b32 v{B}, 5, v{LN}", [LN], [B])
    s.valu(f"v_lshlrev_b32 v{VQO}, 8, v{A}", [A], [VQO])
    s.valu(f"v_lshl_add_u32 v{VQO}, v{B}, 4, v{VQO}", [B, VQO], [VQO])
    s.valu(f"v_and_b32 v{VT}, 15, v{A}", [A], [VT])
    s.valu(f"v_xor_b32 v{VT}, v{VT}, v{B}", [VT, B], [VT])
    for kk in range(8):
        s.valu(f"v_xor_b32 v{KA+kk}, {2*kk}, v{VT}", [VT], [KA+kk])
        s.valu(f"v_lshlrev_b32 v{KA+kk}, 4, v{KA+kk}", [KA+kk], [KA+kk])
        s.valu(f"v_lshl_add_u32 v{KA+kk}, v{A}, 8, v{KA+kk}", [A, KA+kk], [KA+kk])
    R = A;
    s.valu(f"v_bfe_u32 v{R}, v{LN}, 2, 2", [LN], [R])
    s.valu(f"v_lshl_add_u32 v{VT}, v{B}, 2, v{R}", [B, R], [VT])
    s.valu(f"v_lshlrev_b32 v{VT}, 8, v{VT}", [VT], [VT])
    s.valu(f"v_bfe_u32 v{B}, v{LN}, 4, 1", [LN], [B])
    s.valu(f"v_lshl_add_u32 v{VT}, v{B}, 5, v{VT}", [B, VT], [VT])
    s.valu(f"v_and_b32 v{B}, 3, v{LN}", [LN], [B])
    s.valu(f"v_lshl_add_u32 v{VT}, v{B}, 3, v{VT}", [B, VT], [VT])
    s.valu(f"v_add_u32 v{VT}, {VBASE}, v{VT}", [VT], [VT])
    for dt in range(4):
        s.valu(f"v_xor_b32 v{VA+dt}, {dt}, v{R}", [R], [VA+dt])
        s.valu(f"v_lshl_add_u32 v{VA+dt}, v{VA+dt}, 6, v{VT}", [VA+dt, VT], [VA+dt])
    RI = A; CI = B
    s.valu(f"v_lshrrev_b32 v{RI}, 4, v{LN}", [LN], [RI])
    s.valu(f"v_and_b32 v{CI}, 15, v{LN}", [LN], [CI])
    s.valu(f"v_lshlrev_b32 v{VT}, 2, v{RI}", [RI], [VT])
    s.valu(f"v_xor_b32 v{VT}, v{VT}, v{CI}", [VT, CI], [VT])
    s.valu(f"v_lshlrev_b32 v{VT}, 4, v{VT}", [VT], [VT])
    s.valu(f"v_lshl_add_u32 v{VV}, v{RI}, 8, v{VT}", [RI, VT], [VV])
    s.valu(f"v_and_b32 v{VT}, 3, v{W}", [W], [VT])
    s.valu(f"v_lshl_add_u32 v{VT}, v{VT}, 2, v{RI}", [VT, RI], [VT])
    s.valu(f"v_xor_b32 v{VT}, v{VT}, v{CI}", [VT, CI], [VT])
    s.valu(f"v_lshlrev_b32 v{VT}, 4, v{VT}", [VT], [VT])
    s.valu(f"v_lshl_add_u32 v{VK}, v{RI}, 8, v{VT}", [RI, VT], [VK])
    s.salu("s_waitcnt lgkmcnt(0)")
    for (d, p, n) in ((12, 4, Q_BYTES), (16, 6, K_BYTES), (20, 8, K_BYTES), (24, 10, Q_BYTES)):
        s.salu(f"s_mov_b32 s{d}, s{p}")
        s.salu(f"s_and_b32 s{d+1}, s{p+1}, 0xffff")
        s.salu(f"s_mov_b32 s{d+2}, {n}")
        s.salu(f"s_mov_b32 s{d+3}, 0x00020000")

def load_q(buf, p, tag):
    for kk in range(8):
        s.vmem(f"buffer_load_dwordx4 {vs(Q[buf]+4*kk,4)}, v{VQO}, s[12:15], s{33+p} offen offset:{32*kk}",
               [VQO], vr(Q[buf]+4*kk, 4), tag)

def dma_k(ch, tag):
    for i in range(4):
        off = 1024 * (ch * 32 + i * 8)
        s.salu(f"s_add_u32 m0, s36, {off}")
        s.salu(f"s_add_u32 s38, s37, {off}")
        s.vmem(f"buffer_load_dwordx4 v{VK}, s[16:19], s38 offen lds", [VK], [], tag)

def dma_v(ch, slot, tag):
    for i in range(4):
        s.salu(f"s_add_u32 m0, s36, {VBASE + slot*32768 + 8192*i}")
        s.salu(f"s_add_u32 s38, s37, {ch*32768 + 8192*i}")
        s.vmem(f"buffer_load_dwordx4 v{VV}, s[20:23], s38 offen lds", [VV], [], tag)

def barrier():
    s.salu("s_barrier")

class Item:
    def __init__(self, kind, **kw):
        self.kind = kind; self.__dict__.update(kw); self.pre = None; self.post = None

def ktile(p, t):
    if p == 1:
        return [4, 5, 2, 3, 0, 1][t]
    return t

def qk_items(p, t):
    it = []
    tk = ktile(p, t)
    for u in range(2):
        for kk in range(8):
            it.append(Item("qk", p=p, t=t, u=u, kk=kk, st=2*tk+u))
    return it

def pv_items(p, t):
    it = []
    for ks in range(4):
        for dt in range(4):
            it.append(Item("pv", p=p, t=t, ks=ks, dt=dt))
    return it

kwin = [0] * 8

def issue_frag(idx, it):
    f = F + 4 * (idx % NF)
    tag = f"f{idx}"
    if it.kind == "qk":
        off = it.st * 8192
        kk = it.kk
        if not (kwin[kk] <= off < kwin[kk] + 65536):
            nb = 32768 if off >= 65536 else 0
            d = (nb - kwin[kk]) & 0xffffffff
            s.valu(f"v_add_u32 v{KA+kk}, 0x{d:08x}, v{KA+kk}", [KA+kk], [KA+kk])
            kwin[kk] = nb
        s.ds(f"ds_read_b128 {vs(f,4)}, v{KA+kk} offset:{off-kwin[kk]}", [KA+kk], vr(f,4), tag)
    else:
        slot = [0, 0, 1, 1, 0, 0][it.t]
        koff = (it.t % 2) * 64 + 16 * it.ks
        off = slot * 32768 + koff * 256
        s.ds(f"ds_read_b64_tr_b16 {vs(f,2)}, v{VA+it.dt} offset:{off}", [VA+it.dt], vr(f,2), tag)
        s.ds(f"ds_read_b64_tr_b16 {vs(f+2,2)}, v{VA+it.dt} offset:{off+2048}", [VA+it.dt], vr(f+2,2), tag)

def issue_mfma(idx, it):
    f = F + 4 * (idx % NF)
    s.wait_lg(f"f{idx}")
    if it.kind == "qk":
        b = it.t % 2
        d = S[b] + 16 * it.u
        s.mfma(d, f, Q[it.p % 2] + 4 * it.kk, d if it.kk > 0 else None)
    else:
        b = it.t % 2
        pr = S[b] + 16 * (it.ks // 2) + 8 * (it.ks % 2)
        d = O + 16 * it.dt
        first = (it.t == 0 and it.ks == 0)
        s.mfma(d, f, pr, None if first else d)

def V(text, rd, wr, **kw):
    return lambda: s.valu(text, rd, wr, **kw)

def sm_stream(t, first):
    b = t % 2
    base = S[b]
    out = []
    if first:
        M = [T0, T1, T2, T3]
        for cc in ((0, 1), (2, 3)):
            for c in cc:
                r = base + 8 * c
                out.append(V(f"v_max3_f32 v{M[c]}, v{r}, v{r+1}, v{r+2}", [r, r+1, r+2], [M[c]]))
            for stp in range(2):
                for c in cc:
                    r = base + 8 * c + 3 + 2 * stp
                    out.append(V(f"v_max3_f32 v{M[c]}, v{M[c]}, v{r}, v{r+1}", [M[c], r, r+1], [M[c]]))
            for c in cc:
                r = base + 8 * c + 7
                out.append(V(f"v_max_f32 v{M[c]}, v{M[c]}, v{r}", [M[c], r], [M[c]]))
        out.append(V(f"v_max3_f32 v{T0}, v{T0}, v{T1}, v{T2}", [T0, T1, T2], [T0]))
        out.append(V(f"v_max_f32 v{T0}, v{T0}, v{T3}", [T0, T3], [T0]))
        out.append(V(f"v_mov_b32 v{T1}, v{T0}", [T0], [T1]))
        out.append(lambda: s.nop(2))
        out.append(V(f"v_permlane32_swap_b32 v{T0}, v{T1}", [T0, T1], [T0, T1], perm=True))
        out.append(V(f"v_max_f32 v{T0}, v{T0}, v{T1}", [T0, T1], [T0]))
        out.append(V(f"v_mul_f32 v{NM[0]}, {NC_LIT}, v{T0}", [T0], [NM[0]]))
        out.append(V(f"v_mul_f32 v{NM[1]}, {NC_LIT}, v{T0}", [T0], [NM[1]]))
    out += sm_core(base)
    return out

def sm_core(base):
    out = []
    def fma(e):
        r = base + e
        nm = NM[1] if r % 4 == 0 else NM[0]
        return V(f"v_fmamk_f32 v{r}, v{r}, {C_LIT}, v{nm}", [r, nm], [r])
    def ex(e):
        r = base + e
        return V(f"v_exp_f32 v{r}, v{r}", [r], [r], trans=True)
    def add(e):
        r = base + e
        if e < 8:
            if e % 2 == 0: return None
            a = TS[e // 2]
            return V(f"v_add_f32 v{a}, v{r-1}, v{r}", [r-1, r], [a])
        a = TS[(r + 1) % 4]
        return V(f"v_add_f32 v{a}, v{a}, v{r}", [a, r], [a])
    def cvt(j):
        d = base + 8 * (j // 4) + (j % 4)
        r = base + 2 * j
        return V(f"v_cvt_pk_bf16_f32 v{d}, v{r}, v{r+1}", [r, r+1], [d])
    for stp in range(32 + 4):
        if stp < 32: out.append(fma(stp))
        if 0 <= stp - 1 < 32: out.append(ex(stp - 1))
        if 0 <= stp - 3 < 32:
            a = add(stp - 3)
            if a: out.append(a)
            if (stp - 3) % 2 == 1: out.append(cvt((stp - 3) // 2))
    out.append(V(f"v_add_f32 v{TS[0]}, v{TS[0]}, v{TS[1]}", [TS[0], TS[1]], [TS[0]]))
    out.append(V(f"v_add_f32 v{TS[2]}, v{TS[2]}, v{TS[3]}", [TS[2], TS[3]], [TS[2]]))
    out.append(V(f"v_add_f32 v{TS[0]}, v{TS[0]}, v{TS[2]}", [TS[0], TS[2]], [TS[0]]))
    return out

def sm_finish(p, t):
    if t == 0:
        s.valu(f"v_mov_b32 v{L}, v{TS[0]}", [TS[0]], [L])
    else:
        lab = f"L_slow_{p}_{t}"; back = f"L_back_{p}_{t}"
        s.raw(f"v_cmp_lt_f32 vcc, {THR_LIT}, v{TS[0]}", "valu", [TS[0]], [])
        s.salu(f"s_cbranch_vccnz {lab}")
        s.label(back)
        s.valu(f"v_add_f32 v{L}, v{L}, v{TS[0]}", [L, TS[0]], [L])
        slow.append((lab, back, p, t, list(kwin)))

def inv_stream():
    out = []
    out.append(V(f"v_mov_b32 v{INV}, v{L}", [L], [INV]))
    out.append(V(f"v_mov_b32 v{VT}, v{L}", [L], [VT]))
    out.append(lambda: s.nop(2))
    out.append(V(f"v_permlane32_swap_b32 v{INV}, v{VT}", [INV, VT], [INV, VT], perm=True))
    out.append(V(f"v_add_f32 v{INV}, v{INV}, v{VT}", [INV, VT], [INV]))
    out.append(V(f"v_rcp_f32 v{INV}, v{INV}", [INV], [INV], trans=True))
    out.append(lambda: s.nop(1))
    return out

def epi_stream(p):
    out = []
    for dt in range(4):
        for gp in range(2):
            r = O + 16 * dt + 8 * gp
            for e in range(8):
                out.append(V(f"v_mul_f32 v{r+e}, v{r+e}, v{INV}", [r+e, INV], [r+e]))
            for j in range(4):
                out.append(V(f"v_cvt_pk_bf16_f32 v{r+j}, v{r+2*j}, v{r+2*j+1}", [r+2*j, r+2*j+1], [r+j]))
            out.append(lambda: s.nop(2))
            out.append(V(f"v_permlane32_swap_b32 v{r}, v{r+2}", [r, r+2], [r, r+2], perm=True))
            out.append(V(f"v_permlane32_swap_b32 v{r+1}, v{r+3}", [r+1, r+3], [r+1, r+3], perm=True))
            def st(r=r, dt=dt, gp=gp):
                s.vmem(f"buffer_store_dwordx4 {vs(r,4)}, v{VQO}, s[24:27], s{33+p} offen offset:{64*dt+32*gp}",
                       [VQO] + vr(r, 4), [], f"o{p}", store=True)
            out.append(st)
    return out

def build():
    prologue()
    load_q(0, 0, "q0")
    dma_k(0, "k0"); dma_v(0, 0, "v0"); dma_k(1, "k1"); dma_v(1, 1, "v1"); dma_k(2, "k2")
    load_q(1, 1, "q1")

    bodies = []
    bodies.append(dict(items=qk_items(0, 0), va=[], vb=[], fin=None, start=None))
    for p in range(3):
        for t in range(6):
            items = []
            if t > 0: items += pv_items(p, t - 1)
            elif p > 0: items += pv_items(p - 1, 5)
            npv = len(items)
            if t < 5: items += qk_items(p, t + 1)
            elif p < 2: items += qk_items(p + 1, 0)
            va = []; vb = []
            start = None
            if t == 0 and p > 0:
                va += inv_stream()
                vb = epi_stream(p - 1)
                if p == 1:
                    start = lambda: load_q(0, 2, "q2")
            va += sm_stream(t, t == 0)
            bodies.append(dict(items=items, va=va, vb=vb, fin=(p, t), start=start, p=p, t=t, npv=npv))
    bodies.append(dict(items=pv_items(2, 5), va=inv_stream(), vb=[], fin=None, start=None, tail=True))

    allitems = []
    for b in bodies:
        allitems += b["items"]
    def find(kind, p, t, first=True):
        c = [i for i in allitems if i.kind == kind and i.p == p and i.t == t]
        return c[0] if first else c[-1]
    def sync(tag):
        def f():
            s.wait_vm(tag); barrier()
        return f
    find("qk", 0, 0).pre = sync("k0")
    find("pv", 0, 0).pre = sync("k1")
    for p in range(3):
        ch = [2, 0, 2][p]
        def post(p=p, ch=ch):
            if p == 0: s.wait_vm("k2")
            barrier()
            dma_v(ch, 0, f"vr{p}")
        find("pv", p, 1, first=False).post = post
        find("pv", p, 4).pre = sync(f"vr{p}")
    qwait = {}
    for p in (1, 2):
        qwait[id(find("qk", p, 0))] = f"q{p}"

    idx = 0
    nfr = 0
    N = len(allitems)
    def pump(upto):
        nonlocal nfr
        while nfr < min(upto, N):
            it = allitems[nfr]
            if it.pre: it.pre()
            issue_frag(nfr, it)
            nfr += 1
    for b in bodies:
        items = b["items"]; va = list(b["va"]); vb = list(b["vb"])
        if b["start"]: b["start"]()
        n = len(items)
        ia = 0; ib = 0
        for j, it in enumerate(items):
            pump(idx + 1)
            if id(it) in qwait: s.wait_vm(qwait[id(it)])
            issue_mfma(idx, it)
            if it.post: it.post()
            idx += 1
            pump(idx + PF)
            ta = (len(va) * (j + 1)) // n
            while ia < ta:
                va[ia](); ia += 1
            if vb and j >= 17:
                tb = (len(vb) * (j - 16)) // (n - 17)
                while ib < tb:
                    vb[ib](); ib += 1
        assert ia == len(va) and ib == len(vb)
        if b["fin"]:
            sm_finish(*b["fin"])
        if b.get("tail"):
            s.nop(12)
            for c in epi_stream(2): c()
    s.label("L_end")
    s.salu("s_endpgm")

def slow_paths():
    for (lab, back, p, t, kw) in slow:
        b = t % 2
        base = S[b]
        s.label(lab)
        s.nop(16)
        tk = ktile(p, t)
        for u in range(2):
            for kk in range(8):
                off = (2 * tk + u) * 8192
                f = SF[kk % 2]
                d = (off - kw[kk]) & 0xffffffff
                s.valu(f"v_add_u32 v{VT}, 0x{d:08x}, v{KA+kk}", [KA+kk], [VT])
                s.raw(f"ds_read_b128 {vs(f,4)}, v{VT}", "ds", [VT], vr(f, 4))
                s.salu("s_waitcnt lgkmcnt(0)")
                dd = base + 16 * u
                s.mfma(dd, f, Q[p % 2] + 4 * kk, dd if kk > 0 else None)
        s.nop(16)
        s.valu(f"v_max3_f32 v{T0}, v{base}, v{base+1}, v{base+2}", vr(base,3), [T0])
        for e in range(3, 31, 2):
            s.valu(f"v_max3_f32 v{T0}, v{T0}, v{base+e}, v{base+e+1}", [T0, base+e, base+e+1], [T0])
        s.valu(f"v_max_f32 v{T0}, v{T0}, v{base+31}", [T0, base+31], [T0])
        s.valu(f"v_mov_b32 v{T1}, v{T0}", [T0], [T1])
        s.nop(2)
        s.valu(f"v_permlane32_swap_b32 v{T0}, v{T1}", [T0, T1], [T0, T1], perm=True)
        s.valu(f"v_max_f32 v{T0}, v{T0}, v{T1}", [T0, T1], [T0])
        s.valu(f"v_mul_f32 v{T0}, {NC_LIT}, v{T0}", [T0], [T0])
        s.valu(f"v_min_f32 v{T0}, v{T0}, v{NM[0]}", [T0, NM[0]], [T0])
        s.valu(f"v_sub_f32 v{T1}, v{T0}, v{NM[0]}", [T0, NM[0]], [T1])
        s.valu(f"v_exp_f32 v{T1}, v{T1}", [T1], [T1], trans=True)
        s.valu(f"v_mov_b32 v{NM[0]}, v{T0}", [T0], [NM[0]])
        s.valu(f"v_mov_b32 v{NM[1]}, v{T0}", [T0], [NM[1]])
        s.valu(f"v_mul_f32 v{L}, v{L}, v{T1}", [L, T1], [L])
        for r in range(64):
            s.valu(f"v_mul_f32 v{O+r}, v{O+r}, v{T1}", [O+r, T1], [O+r])
        for c in sm_core(base): c()
        s.nop(4)
        s.salu(f"s_branch {back}")

build()
main_n = len(s.ins)
slow_paths()
errs = check_hazards(s.ins[:main_n], "main") + check_hazards(s.ins[main_n:], "slow")
for e in errs: print("HAZARD:", e, file=sys.stderr)

hdr = open("standalone__gqa_softmax__near_ridge.s.ref").read().split("; Override launch")[0]
out = hdr + """; Override launch geometry by editing the next line (default: block=256,
; grid=ceil(out_elems/256), lds=0). Harness parses it; keep it on one line.
; @launch grid=(256,1,1) block=(512,1,1) lds=163840
.amdgcn_target "amdgcn-amd-amdhsa--gfx950"
.text
.globl standalone__gqa_softmax__near_ridge_kernel
.p2align 8
.type standalone__gqa_softmax__near_ridge_kernel,@function
standalone__gqa_softmax__near_ridge_kernel:
""" + s.text() + """.section .rodata,"a"
.p2align 6
.amdhsa_kernel standalone__gqa_softmax__near_ridge_kernel
  .amdhsa_next_free_vgpr 256
  .amdhsa_next_free_sgpr 48
  .amdhsa_accum_offset 256
  .amdhsa_group_segment_fixed_size 0
  .amdhsa_kernarg_size 48
  .amdhsa_user_sgpr_count 2
  .amdhsa_user_sgpr_kernarg_segment_ptr 1
  .amdhsa_system_sgpr_workgroup_id_x 1
.end_amdhsa_kernel
"""
dst = sys.argv[1] if len(sys.argv) > 1 else "standalone__gqa_softmax__near_ridge.s"
open(dst, "w").write(out)
print("instructions:", len(s.ins), "main:", main_n, "hazards:", len(errs), "autonops:", s.autonops)
```

```python
import sys, struct, math
from asmlib import *

def f2u(x): return struct.unpack("<I", struct.pack("<f", x))[0]

PF = 5
THR = 16384.0
CSC = math.log2(math.e) / math.sqrt(128.0)
C_LIT = f"0x{f2u(CSC):08x}"
NC_LIT = f"0x{f2u(-CSC):08x}"
THR_LIT = f"0x{f2u(THR):08x}"

O = 0
S = [64, 96]
Q = [128, 160]
F = 192
NF = 8
KA = 224
VA = 232
VQO = 236; VK = 237; VV = 238; VT = 239
NM = [240, 241]
L = 242; INV = 243
TS = [244, 245, 246, 247]
T0 = 248; T1 = 249; T2 = 250; T3 = 251
SF = [248, 252]

K_BYTES = 16 * 4 * 384 * 128 * 2
Q_BYTES = 16 * 32 * 384 * 128 * 2
VBASE = 98304

import os
STAMPS = int(os.environ.get("STAMPS", "0"))
NOSM = int(os.environ.get("NOSM", "0"))
NOLDS = int(os.environ.get("NOLDS", "0"))
NOEXP = int(os.environ.get("NOEXP", "0"))
s = Stream()
nstamp = [0]
def stamp():
    if not STAMPS: return
    k = nstamp[0]; nstamp[0] += 1
    s.salu(f"{'s_memtime' if STAMPS==2 else 's_memrealtime'} s[{48+2*k}:{49+2*k}]")
    s.salu("s_waitcnt lgkmcnt(0)")
    s.lg = []
def stamp_flush():
    if not STAMPS: return
    n = nstamp[0]
    s.salu("s_load_dwordx2 s[40:41], s[0:1], 40")
    s.salu("s_waitcnt lgkmcnt(0)")
    s.salu("s_and_b32 s41, s41, 0xffff")
    s.salu("s_mov_b32 s42, 0x1000000")
    s.salu("s_mov_b32 s43, 0x00020000")
    s.salu("s_lshl_b32 s44, s2, 3")
    s.salu("s_add_u32 s44, s44, s28")
    s.salu(f"s_mul_i32 s44, s44, {4*16}")
    s.valu(f"v_mov_b32 v{T1}, 0", [], [T1])
    for k in range(16):
        kk = min(k, n-1)
        s.valu(f"v_mov_b32 v{T0}, s{48+2*kk}", [], [T0])
        s.raw(f"buffer_store_dword v{T0}, v{T1}, s[40:43], s44 offen offset:{4*k}", "store", [T0, T1], [])
        s.nop(2)
slow = []

def prologue():
    s.salu("s_cmp_ge_u32 s2, 256")
    s.salu("s_cbranch_scc1 L_end")
    stamp()
    s.salu("s_load_dwordx4 s[4:7], s[0:1], 0")
    s.salu("s_load_dwordx4 s[8:11], s[0:1], 16")
    LN = T0; W = T1; A = T2; B = T3
    s.valu(f"v_and_b32 v{LN}, 63, v0", [0], [LN])
    s.valu(f"v_lshrrev_b32 v{W}, 6, v0", [0], [W])
    s.nop(1)
    s.raw(f"v_readfirstlane_b32 s28, v{W}", "valu", [W], [])
    s.salu("s_and_b32 s30, s2, 7")
    s.salu("s_lshr_b32 s31, s2, 3")
    s.salu("s_lshr_b32 s32, s31, 2")
    s.salu("s_lshl_b32 s30, s30, 3")
    s.salu("s_add_u32 s30, s30, s32")
    s.salu("s_and_b32 s31, s31, 3")
    s.salu("s_mul_i32 s29, s30, 98304")
    s.salu("s_mul_i32 s33, s30, 786432")
    s.salu("s_mul_i32 s34, s31, 196608")
    s.salu("s_add_u32 s33, s33, s34")
    s.salu("s_lshl_b32 s34, s28, 13")
    s.salu("s_add_u32 s33, s33, s34")
    s.salu("s_add_u32 s34, s33, 65536")
    s.salu("s_add_u32 s35, s33, 131072")
    s.salu("s_lshl_b32 s36, s28, 10")
    s.salu("s_add_u32 s37, s29, s36")
    s.valu(f"v_and_b32 v{A}, 31, v{LN}", [LN], [A])
    s.valu(f"v_lshrrev_b32 v{B}, 5, v{LN}", [LN], [B])
    s.valu(f"v_lshlrev_b32 v{VQO}, 8, v{A}", [A], [VQO])
    s.valu(f"v_lshl_add_u32 v{VQO}, v{B}, 4, v{VQO}", [B, VQO], [VQO])
    s.valu(f"v_and_b32 v{VT}, 15, v{A}", [A], [VT])
    s.valu(f"v_xor_b32 v{VT}, v{VT}, v{B}", [VT, B], [VT])
    for kk in range(8):
        s.valu(f"v_xor_b32 v{KA+kk}, {2*kk}, v{VT}", [VT], [KA+kk])
        s.valu(f"v_lshlrev_b32 v{KA+kk}, 4, v{KA+kk}", [KA+kk], [KA+kk])
        s.valu(f"v_lshl_add_u32 v{KA+kk}, v{A}, 8, v{KA+kk}", [A, KA+kk], [KA+kk])
    R = A;
    s.valu(f"v_bfe_u32 v{R}, v{LN}, 2, 2", [LN], [R])
    s.valu(f"v_lshl_add_u32 v{VT}, v{B}, 2, v{R}", [B, R], [VT])
    s.valu(f"v_lshlrev_b32 v{VT}, 8, v{VT}", [VT], [VT])
    s.valu(f"v_bfe_u32 v{B}, v{LN}, 4, 1", [LN], [B])
    s.valu(f"v_lshl_add_u32 v{VT}, v{B}, 5, v{VT}", [B, VT], [VT])
    s.valu(f"v_and_b32 v{B}, 3, v{LN}", [LN], [B])
    s.valu(f"v_lshl_add_u32 v{VT}, v{B}, 3, v{VT}", [B, VT], [VT])
    s.valu(f"v_add_u32 v{VT}, {VBASE}, v{VT}", [VT], [VT])
    for dt in range(4):
        s.valu(f"v_xor_b32 v{VA+dt}, {dt}, v{R}", [R], [VA+dt])
        s.valu(f"v_lshl_add_u32 v{VA+dt}, v{VA+dt}, 6, v{VT}", [VA+dt, VT], [VA+dt])
    RI = A; CI = B
    s.valu(f"v_lshrrev_b32 v{RI}, 4, v{LN}", [LN], [RI])
    s.valu(f"v_and_b32 v{CI}, 15, v{LN}", [LN], [CI])
    s.valu(f"v_lshlrev_b32 v{VT}, 2, v{RI}", [RI], [VT])
    s.valu(f"v_xor_b32 v{VT}, v{VT}, v{CI}", [VT, CI], [VT])
    s.valu(f"v_lshlrev_b32 v{VT}, 4, v{VT}", [VT], [VT])
    s.valu(f"v_lshl_add_u32 v{VV}, v{RI}, 8, v{VT}", [RI, VT], [VV])
    s.valu(f"v_and_b32 v{VT}, 3, v{W}", [W], [VT])
    s.valu(f"v_lshl_add_u32 v{VT}, v{VT}, 2, v{RI}", [VT, RI], [VT])
    s.valu(f"v_xor_b32 v{VT}, v{VT}, v{CI}", [VT, CI], [VT])
    s.valu(f"v_lshlrev_b32 v{VT}, 4, v{VT}", [VT], [VT])
    s.valu(f"v_lshl_add_u32 v{VK}, v{RI}, 8, v{VT}", [RI, VT], [VK])
    s.salu("s_waitcnt lgkmcnt(0)")
    stamp()
    for (d, p, n) in ((12, 4, Q_BYTES), (16, 6, K_BYTES), (20, 8, K_BYTES), (24, 10, Q_BYTES)):
        s.salu(f"s_mov_b32 s{d}, s{p}")
        s.salu(f"s_and_b32 s{d+1}, s{p+1}, 0xffff")
        s.salu(f"s_mov_b32 s{d+2}, {n}")
        s.salu(f"s_mov_b32 s{d+3}, 0x00020000")

def load_q(buf, p, tag, kks=range(8)):
    for kk in kks:
        s.vmem(f"buffer_load_dwordx4 {vs(Q[buf]+4*kk,4)}, v{VQO}, s[12:15], s{33+p} offen offset:{32*kk}",
               [VQO], vr(Q[buf]+4*kk, 4), tag)

def dma_k(ch, tag):
    for i in range(4):
        off = 1024 * (ch * 32 + i * 8)
        s.salu(f"s_add_u32 m0, s36, {off}")
        s.salu(f"s_add_u32 s38, s37, {off}")
        s.vmem(f"buffer_load_dwordx4 v{VK}, s[16:19], s38 offen lds", [VK], [], tag)

def dma_v(ch, slot, tag):
    for i in range(4):
        s.salu(f"s_add_u32 m0, s36, {VBASE + slot*32768 + 8192*i}")
        s.salu(f"s_add_u32 s38, s37, {ch*32768 + 8192*i}")
        s.vmem(f"buffer_load_dwordx4 v{VV}, s[20:23], s38 offen lds", [VV], [], tag)

def barrier():
    s.salu("s_barrier")

class Item:
    def __init__(self, kind, **kw):
        self.kind = kind; self.__dict__.update(kw); self.pre = None; self.post = None

def ktile(p, t):
    if p == 1:
        return [4, 5, 2, 3, 0, 1][t]
    return t

def qk_items(p, t):
    it = []
    tk = ktile(p, t)
    for u in range(2):
        for kk in range(8):
            it.append(Item("qk", p=p, t=t, u=u, kk=kk, st=2*tk+u))
    return it

def pv_items(p, t):
    it = []
    for ks in range(4):
        for dt in range(4):
            it.append(Item("pv", p=p, t=t, ks=ks, dt=dt))
    return it

kwin = [0] * 8

def issue_frag(idx, it):
    f = F + 4 * (idx % NF)
    tag = f"f{idx}"
    if NOLDS and idx >= 8: return
    if it.kind == "qk":
        off = it.st * 8192
        kk = it.kk
        if not (kwin[kk] <= off < kwin[kk] + 65536):
            nb = 32768 if off >= 65536 else 0
            d = (nb - kwin[kk]) & 0xffffffff
            s.valu(f"v_add_u32 v{KA+kk}, 0x{d:08x}, v{KA+kk}", [KA+kk], [KA+kk])
            kwin[kk] = nb
        s.ds(f"ds_read_b128 {vs(f,4)}, v{KA+kk} offset:{off-kwin[kk]}", [KA+kk], vr(f,4), tag)
    else:
        slot = [0, 0, 1, 1, 0, 0][it.t]
        koff = (it.t % 2) * 64 + 16 * it.ks
        off = slot * 32768 + koff * 256
        s.ds(f"ds_read_b64_tr_b16 {vs(f,2)}, v{VA+it.dt} offset:{off}", [VA+it.dt], vr(f,2), tag)
        s.ds(f"ds_read_b64_tr_b16 {vs(f+2,2)}, v{VA+it.dt} offset:{off+2048}", [VA+it.dt], vr(f+2,2), tag)

def issue_mfma(idx, it):
    f = F + 4 * (idx % NF)
    s.wait_lg(f"f{idx}")
    if it.kind == "qk":
        b = it.t % 2
        d = S[b] + 16 * it.u
        s.mfma(d, f, Q[it.p % 2] + 4 * it.kk, d if it.kk > 0 else None)
    else:
        b = it.t % 2
        pr = S[b] + 16 * (it.ks // 2) + 8 * (it.ks % 2)
        d = O + 16 * it.dt
        first = (it.t == 0 and it.ks == 0)
        s.mfma(d, f, pr, None if first else d)

def V(text, rd, wr, **kw):
    return lambda: s.valu(text, rd, wr, **kw)

def sm_stream(t, first):
    b = t % 2
    base = S[b]
    out = []
    if first:
        M = [T0, T1, T2, T3]
        for cc in ((0, 1), (2, 3)):
            for c in cc:
                r = base + 8 * c
                out.append(V(f"v_max3_f32 v{M[c]}, v{r}, v{r+1}, v{r+2}", [r, r+1, r+2], [M[c]]))
            for stp in range(2):
                for c in cc:
                    r = base + 8 * c + 3 + 2 * stp
                    out.append(V(f"v_max3_f32 v{M[c]}, v{M[c]}, v{r}, v{r+1}", [M[c], r, r+1], [M[c]]))
            for c in cc:
                r = base + 8 * c + 7
                out.append(V(f"v_max_f32 v{M[c]}, v{M[c]}, v{r}", [M[c], r], [M[c]]))
        out.append(V(f"v_max3_f32 v{T0}, v{T0}, v{T1}, v{T2}", [T0, T1, T2], [T0]))
        out.append(V(f"v_max_f32 v{T0}, v{T0}, v{T3}", [T0, T3], [T0]))
        out.append(V(f"v_mov_b32 v{T1}, v{T0}", [T0], [T1]))
        out.append(lambda: s.nop(2))
        out.append(V(f"v_permlane32_swap_b32 v{T0}, v{T1}", [T0, T1], [T0, T1], perm=True))
        out.append(V(f"v_max_f32 v{T0}, v{T0}, v{T1}", [T0, T1], [T0]))
        out.append(V(f"v_mul_f32 v{NM[0]}, {NC_LIT}, v{T0}", [T0], [NM[0]]))
        out.append(V(f"v_mul_f32 v{NM[1]}, {NC_LIT}, v{T0}", [T0], [NM[1]]))
    if not NOSM: out += sm_core(base)
    return out

def sm_core(base):
    out = []
    def fma(e):
        r = base + e
        nm = NM[1] if r % 4 == 0 else NM[0]
        return V(f"v_fmamk_f32 v{r}, v{r}, {C_LIT}, v{nm}", [r, nm], [r])
    def ex(e):
        r = base + e
        if NOEXP: return V(f"v_mul_f32 v{r}, v{r}, v{r}", [r], [r])
        return V(f"v_exp_f32 v{r}, v{r}", [r], [r], trans=True)
    def add(e):
        r = base + e
        if e < 8:
            if e % 2 == 0: return None
            a = TS[e // 2]
            return V(f"v_add_f32 v{a}, v{r-1}, v{r}", [r-1, r], [a])
        a = TS[(r + 1) % 4]
        return V(f"v_add_f32 v{a}, v{a}, v{r}", [a, r], [a])
    def cvt(j):
        d = base + 8 * (j // 4) + (j % 4)
        r = base + 2 * j
        return V(f"v_cvt_pk_bf16_f32 v{d}, v{r}, v{r+1}", [r, r+1], [d])
    for stp in range(32 + 4):
        if stp < 32: out.append(fma(stp))
        if 0 <= stp - 1 < 32: out.append(ex(stp - 1))
        if 0 <= stp - 3 < 32:
            a = add(stp - 3)
            if a: out.append(a)
            if (stp - 3) % 2 == 1: out.append(cvt((stp - 3) // 2))
    out.append(V(f"v_add_f32 v{TS[0]}, v{TS[0]}, v{TS[1]}", [TS[0], TS[1]], [TS[0]]))
    out.append(V(f"v_add_f32 v{TS[2]}, v{TS[2]}, v{TS[3]}", [TS[2], TS[3]], [TS[2]]))
    out.append(V(f"v_add_f32 v{TS[0]}, v{TS[0]}, v{TS[2]}", [TS[0], TS[2]], [TS[0]]))
    return out

def sm_finish(p, t):
    if t == 0:
        s.valu(f"v_mov_b32 v{L}, v{TS[0]}", [TS[0]], [L])
    else:
        lab = f"L_slow_{p}_{t}"; back = f"L_back_{p}_{t}"
        s.raw(f"v_cmp_lt_f32 vcc, {THR_LIT}, v{TS[0]}", "valu", [TS[0]], [])
        s.salu(f"s_cbranch_vccnz {lab}")
        s.label(back)
        s.valu(f"v_add_f32 v{L}, v{L}, v{TS[0]}", [L, TS[0]], [L])
        slow.append((lab, back, p, t, list(kwin)))

def inv_stream():
    out = []
    out.append(V(f"v_mov_b32 v{INV}, v{L}", [L], [INV]))
    out.append(V(f"v_mov_b32 v{VT}, v{L}", [L], [VT]))
    out.append(lambda: s.nop(2))
    out.append(V(f"v_permlane32_swap_b32 v{INV}, v{VT}", [INV, VT], [INV, VT], perm=True))
    out.append(V(f"v_add_f32 v{INV}, v{INV}, v{VT}", [INV, VT], [INV]))
    out.append(V(f"v_rcp_f32 v{INV}, v{INV}", [INV], [INV], trans=True))
    out.append(lambda: s.nop(1))
    return out

def epi_stream(p):
    out = []
    for dt in range(4):
        for gp in range(2):
            r = O + 16 * dt + 8 * gp
            for e in range(8):
                out.append(V(f"v_mul_f32 v{r+e}, v{r+e}, v{INV}", [r+e, INV], [r+e]))
            for j in range(4):
                out.append(V(f"v_cvt_pk_bf16_f32 v{r+j}, v{r+2*j}, v{r+2*j+1}", [r+2*j, r+2*j+1], [r+j]))
            out.append(lambda: s.nop(2))
            out.append(V(f"v_permlane32_swap_b32 v{r}, v{r+2}", [r, r+2], [r, r+2], perm=True))
            out.append(V(f"v_permlane32_swap_b32 v{r+1}, v{r+3}", [r+1, r+3], [r+1, r+3], perm=True))
            def st(r=r, dt=dt, gp=gp):
                s.vmem(f"buffer_store_dwordx4 {vs(r,4)}, v{VQO}, s[24:27], s{33+p} offen offset:{64*dt+32*gp}",
                       [VQO] + vr(r, 4), [], f"o{p}", store=True)
            out.append(st)
    return out

def build():
    prologue()
    dma_k(0, "k0")
    load_q(0, 0, "q0")

    bodies = []
    bodies.append(dict(items=qk_items(0, 0), va=[], vb=[], fin=None, start=None))
    for p in range(3):
        for t in range(6):
            items = []
            if t > 0: items += pv_items(p, t - 1)
            elif p > 0: items += pv_items(p - 1, 5)
            npv = len(items)
            if t < 5: items += qk_items(p, t + 1)
            elif p < 2: items += qk_items(p + 1, 0)
            va = []; vb = []
            start = None
            if t == 0 and p > 0:
                va += inv_stream()
                vb = epi_stream(p - 1)
            if p < 2 and t in (1, 3):
                start = (lambda p=p, t=t: load_q((p + 1) % 2, p + 1, f"q{p+1}", range(0, 4) if t == 1 else range(4, 8)))
            va += sm_stream(t, t == 0)
            bodies.append(dict(items=items, va=va, vb=vb, fin=(p, t), start=start, p=p, t=t, npv=npv))
    bodies.append(dict(items=pv_items(2, 5), va=inv_stream(), vb=[], fin=None, start=None, tail=True))

    allitems = []
    for b in bodies:
        allitems += b["items"]
    def find(kind, p, t, first=True):
        c = [i for i in allitems if i.kind == kind and i.p == p and i.t == t]
        return c[0] if first else c[-1]
    def sync(tag):
        def f():
            s.wait_vm(tag); barrier(); stamp()
        return f
    def sync0():
        s.wait_vm("k0"); stamp(); barrier(); stamp()
        dma_v(0, 0, "v0"); dma_k(1, "k1")
    def sync1():
        s.wait_vm("k1"); barrier(); stamp()
        dma_v(1, 1, "v1"); dma_k(2, "k2")
    find("qk", 0, 0).pre = sync0
    find("pv", 0, 0).pre = sync1
    for p in range(3):
        ch = [2, 0, 2][p]
        def post(p=p, ch=ch):
            if p == 0: s.wait_vm("k2")
            barrier()
            dma_v(ch, 0, f"vr{p}")
        find("pv", p, 1, first=False).post = post
        find("pv", p, 4).pre = sync(f"vr{p}")
    qwait = {}
    for p in (0, 1, 2):
        qwait[id(find("qk", p, 0))] = f"q{p}"

    idx = 0
    nfr = 0
    N = len(allitems)
    def pump(upto):
        nonlocal nfr
        while nfr < min(upto, N):
            it = allitems[nfr]
            if it.pre: it.pre()
            issue_frag(nfr, it)
            nfr += 1
    for b in bodies:
        items = b["items"]; va = list(b["va"]); vb = list(b["vb"])
        if b["start"]: b["start"]()
        n = len(items)
        ia = 0; ib = 0
        for j, it in enumerate(items):
            pump(idx + 1)
            if id(it) in qwait:
                s.wait_vm(qwait[id(it)])
                if qwait[id(it)] == "q0": stamp()
            issue_mfma(idx, it)
            if it.post: it.post()
            idx += 1
            pump(idx + PF)
            ta = (len(va) * (j + 1)) // n
            while ia < ta:
                va[ia](); ia += 1
            if vb and j >= 17:
                tb = (len(vb) * (j - 16)) // (n - 17)
                while ib < tb:
                    vb[ib](); ib += 1
        assert ia == len(va) and ib == len(vb)
        if b["fin"]:
            sm_finish(*b["fin"])
            if b["fin"][1] == 5: stamp()
        if b.get("tail"):
            s.nop(12)
            stamp()
            for c in epi_stream(2): c()
            stamp()
            if STAMPS: s.wait_all()
            stamp()
            stamp_flush()
    s.label("L_end")
    s.salu("s_endpgm")

def slow_paths():
    for (lab, back, p, t, kw) in slow:
        b = t % 2
        base = S[b]
        s.label(lab)
        s.nop(16)
        tk = ktile(p, t)
        for u in range(2):
            for kk in range(8):
                off = (2 * tk + u) * 8192
                f = SF[kk % 2]
                d = (off - kw[kk]) & 0xffffffff
                s.valu(f"v_add_u32 v{VT}, 0x{d:08x}, v{KA+kk}", [KA+kk], [VT])
                s.raw(f"ds_read_b128 {vs(f,4)}, v{VT}", "ds", [VT], vr(f, 4))
                s.salu("s_waitcnt lgkmcnt(0)")
                dd = base + 16 * u
                s.mfma(dd, f, Q[p % 2] + 4 * kk, dd if kk > 0 else None)
        s.nop(16)
        s.valu(f"v_max3_f32 v{T0}, v{base}, v{base+1}, v{base+2}", vr(base,3), [T0])
        for e in range(3, 31, 2):
            s.valu(f"v_max3_f32 v{T0}, v{T0}, v{base+e}, v{base+e+1}", [T0, base+e, base+e+1], [T0])
        s.valu(f"v_max_f32 v{T0}, v{T0}, v{base+31}", [T0, base+31], [T0])
        s.valu(f"v_mov_b32 v{T1}, v{T0}", [T0], [T1])
        s.nop(2)
        s.valu(f"v_permlane32_swap_b32 v{T0}, v{T1}", [T0, T1], [T0, T1], perm=True)
        s.valu(f"v_max_f32 v{T0}, v{T0}, v{T1}", [T0, T1], [T0])
        s.valu(f"v_mul_f32 v{T0}, {NC_LIT}, v{T0}", [T0], [T0])
        s.valu(f"v_min_f32 v{T0}, v{T0}, v{NM[0]}", [T0, NM[0]], [T0])
        s.valu(f"v_sub_f32 v{T1}, v{T0}, v{NM[0]}", [T0, NM[0]], [T1])
        s.valu(f"v_exp_f32 v{T1}, v{T1}", [T1], [T1], trans=True)
        s.valu(f"v_mov_b32 v{NM[0]}, v{T0}", [T0], [NM[0]])
        s.valu(f"v_mov_b32 v{NM[1]}, v{T0}", [T0], [NM[1]])
        s.valu(f"v_mul_f32 v{L}, v{L}, v{T1}", [L, T1], [L])
        for r in range(64):
            s.valu(f"v_mul_f32 v{O+r}, v{O+r}, v{T1}", [O+r, T1], [O+r])
        for c in sm_core(base): c()
        s.nop(4)
        s.salu(f"s_branch {back}")

build()
main_n = len(s.ins)
slow_paths()
errs = check_hazards(s.ins[:main_n], "main") + check_hazards(s.ins[main_n:], "slow")
for e in errs: print("HAZARD:", e, file=sys.stderr)

hdr = open("standalone__gqa_softmax__near_ridge.s.ref").read().split("; Override launch")[0]
out = hdr + """; Override launch geometry by editing the next line (default: block=256,
; grid=ceil(out_elems/256), lds=0). Harness parses it; keep it on one line.
; @launch grid=(256,1,1) block=(512,1,1) lds=163840
.amdgcn_target "amdgcn-amd-amdhsa--gfx950"
.text
.globl standalone__gqa_softmax__near_ridge_kernel
.p2align 8
.type standalone__gqa_softmax__near_ridge_kernel,@function
standalone__gqa_softmax__near_ridge_kernel:
""" + s.text() + """.section .rodata,"a"
.p2align 6
.amdhsa_kernel standalone__gqa_softmax__near_ridge_kernel
  .amdhsa_next_free_vgpr 256
  .amdhsa_next_free_sgpr 96
  .amdhsa_accum_offset 256
  .amdhsa_group_segment_fixed_size 0
  .amdhsa_kernarg_size 48
  .amdhsa_user_sgpr_count 2
  .amdhsa_user_sgpr_kernarg_segment_ptr 1
  .amdhsa_system_sgpr_workgroup_id_x 1
.end_amdhsa_kernel
"""
dst = sys.argv[1] if len(sys.argv) > 1 else "standalone__gqa_softmax__near_ridge.s"
open(dst, "w").write(out)
print("instructions:", len(s.ins), "main:", main_n, "hazards:", len(errs), "autonops:", s.autonops)
```
